```python
import torch

def _softmax(x, axis=-1):
    return torch.softmax(x, dim=axis)
def _gelu(x):
    return torch.nn.functional.gelu(x, approximate="tanh")
def _silu(x):
    return torch.nn.functional.silu(x)
def _sigmoid(x):
    return torch.sigmoid(x)
def _layernorm(x, axis=-1, eps=1e-5):
    m = x.mean(dim=axis, keepdim=True)
    v = x.var(dim=axis, keepdim=True, unbiased=False)
    return (x - m) / torch.sqrt(v + eps)
def _scatter_add(tgt, idx, src, axis=0):
    return tgt.clone().index_add_(axis, idx, src)
def _segment_sum(src, seg, n):
    out = torch.zeros((n,) + src.shape[1:], dtype=src.dtype)
    return out.index_add_(0, seg, src)
def _pad(x, pw):
    flat = tuple(v for pair in reversed(pw) for v in pair)
    return torch.nn.functional.pad(x, flat)

kernel_name = 'parallel_sum__compressed_kv_cla__glu_gated_glu__prompt'

def setup_inputs():

    _w = (lambda a: (lambda t: t.to(torch.bfloat16) if t.is_floating_point() else t)(torch.as_tensor(a)))
    def _A_setup():
        B, H, Sq, Sk, D, M = 1, 32, 2048, 2048, 128, 512
        Dc = 4 * D
        return {
            "x": _w((lambda *s: torch.randn(*s, dtype=torch.bfloat16) * 0.05)(B, Sq, M)),
            "c_kv": _w((lambda *s: torch.randn(*s, dtype=torch.bfloat16) * 1.6)(B, Sk, Dc)),
            "w_q": _w((lambda *s: torch.randn(*s, dtype=torch.bfloat16) * 0.8)(M, H, D) * (M ** -0.5)),
            "w_uk": _w((lambda *s: torch.randn(*s, dtype=torch.bfloat16) * 0.8)(Dc, H, D) * (Dc ** -0.5)),
            "w_uv": _w((lambda *s: torch.randn(*s, dtype=torch.bfloat16) * 1.6)(Dc, H, D) * (Dc ** -0.5)),
            "w_o": _w((lambda *s: torch.randn(*s, dtype=torch.bfloat16) * 1.6)(H, D, M) * ((H * D) ** -0.5)),
        }
    _A_in = _A_setup()

    def _B_setup():
        B, S, D, F = 1, 2048, 512, 1376
        return {
            "x": _w((lambda *s: torch.randn(*s, dtype=torch.bfloat16) * 0.05)(B, S, D)),
            "w_gate": _w((lambda *s: torch.randn(*s, dtype=torch.bfloat16) * 0.05)(D, F)),
            "w_up": _w((lambda *s: torch.randn(*s, dtype=torch.bfloat16) * 0.05)(D, F)),
            "w_down": _w((lambda *s: torch.randn(*s, dtype=torch.bfloat16) * 0.05)(F, D)),
        }
    _B_in = _B_setup()

    return {
        "A_x": _A_in["x"],
        "A_c_kv": _A_in["c_kv"],
        "A_w_q": _A_in["w_q"],
        "A_w_uk": _A_in["w_uk"],
        "A_w_uv": _A_in["w_uv"],
        "A_w_o": _A_in["w_o"],
        "B_x": _B_in["x"],
        "B_w_gate": _B_in["w_gate"],
        "B_w_up": _B_in["w_up"],
        "B_w_down": _B_in["w_down"],
    }

def reference(A_x, A_c_kv, A_w_q, A_w_uk, A_w_uv, A_w_o, B_x, B_w_gate, B_w_up, B_w_down):
    def _A_ref(x, c_kv, w_q, w_uk, w_uv, w_o):
        B, Sq, M = x.shape[0], x.shape[1], x.shape[2]
        Sk = c_kv.shape[1]
        H, D = w_q.shape[1], w_q.shape[2]
        q = torch.einsum("bqm,mhd->bhqd", x, w_q)
        k = torch.einsum("bkc,chd->bhkd", c_kv, w_uk)
        v = torch.einsum("bkc,chd->bhkd", c_kv, w_uv)
        scores = torch.einsum("bhqd,bhkd->bhqk", q, k) * (D ** -0.5)
        off = Sk - Sq
        qi = torch.arange(Sq)[:, None]
        kj = torch.arange(Sk)[None, :]
        cmask = kj <= (qi + off)
        scores = torch.where(cmask[None, None], scores, -1e9)
        p = _softmax(scores, axis=-1)
        ctx = torch.einsum("bhqk,bhkd->bhqd", p, v)
        return torch.einsum("bhqd,hdm->bqm", ctx, w_o)

    def _B_ref(x, w_gate, w_up, w_down):
        g = torch.einsum("bsd,df->bsf", x, w_gate)
        u = torch.einsum("bsd,df->bsf", x, w_up)
        h = _sigmoid(g) * u
        return torch.einsum("bsf,fd->bsd", h, w_down)

    x = A_x
    xn = _layernorm(x, axis=-1)
    return x + _A_ref(xn, A_c_kv, A_w_q, A_w_uk, A_w_uv, A_w_o) + _B_ref(xn, B_w_gate, B_w_up, B_w_down)
```

```python
import re

_RNG = re.compile(r'\b([vas])\[(\d+):(\d+)\]')
_ONE = re.compile(r'\b([vas])(\d+)\b')
TRANS = ('v_exp_f32', 'v_log_f32', 'v_rcp_f32', 'v_rsq_f32', 'v_sqrt_f32')


def regs_of(tok):
    out = []
    for m in _RNG.finditer(tok):
        out += [(m.group(1), i) for i in range(int(m.group(2)), int(m.group(3)) + 1)]
    t = _RNG.sub('', tok)
    for m in _ONE.finditer(t):
        out.append((m.group(1), int(m.group(2))))
    for n in ('vcc', 'm0', 'exec'):
        if re.search(r'\b' + n + r'(_lo|_hi)?\b', t):
            out.append((n, 0))
    return out


class I:
    def __init__(self, text, lds_rd=None, lds_wr=None, tag=None, alias=()):
        self.text = text.strip()
        self.lds_rd, self.lds_wr, self.tag = lds_rd, lds_wr, tag
        self.alias = alias
        self.nops = 0
        self.auto_lg = None
        self.auto_vm = None
        p = self.text.split(None, 1)
        op = self.op = p[0]
        ops = [x.strip() for x in p[1].split(',')] if len(p) > 1 else []
        R = [regs_of(x) for x in ops]
        allr = [r for x in R for r in x]
        first, rest = (R[0] if R else []), [r for x in R[1:] for r in x]
        self.srcC = []
        self.srcAB = []
        self.passes = 0
        if op.endswith(':') or op.startswith('.'):
            k, rd, wr = 'label', [], []
        elif op.startswith('v_mfma'):
            k, rd, wr = 'mfma', rest, first
            self.srcC, self.srcAB = R[3], R[1] + R[2]
            self.passes = 8 if '32x32' in op else 4
        elif op.startswith('v_permlane'):
            k, rd, wr = 'valu', allr, allr
        elif op.startswith('v_fmac') or op.startswith('v_dot2c'):
            k, rd, wr = 'valu', allr, first
        elif op.startswith('v_add_co') or op.startswith('v_addc_co'):
            k, rd, wr = 'valu', [r for x in R[2:] for r in x], R[0] + R[1]
        elif op.startswith('v_'):
            k, rd, wr = 'valu', rest, first
        elif op.startswith('ds_read') or op.startswith('ds_bperm') or op.startswith('ds_swiz'):
            k, rd, wr = 'ds', rest, first
        elif op.startswith('ds_'):
            k, rd, wr = 'ds', allr, []
        elif op.startswith('buffer_load') and re.search(r'\blds\b', self.text):
            k, rd, wr = 'vm', allr + [('m0', 0)], []
        elif op.startswith('buffer_load') or op.startswith('global_load'):
            k, rd, wr = 'vm', rest, first
        elif op.startswith('buffer_') or op.startswith('global_'):
            k, rd, wr = 'vm', allr, []
        elif op.startswith('s_load') or op.startswith('s_mem'):
            k, rd, wr = 'smem', rest, first
        elif op.startswith('s_cmp') or op.startswith('s_cbranch') or op in ('s_branch', 's_endpgm', 's_setprio', 's_sleep', 's_nop', 's_waitcnt'):
            k, rd, wr = 'salu', allr, []
        elif op == 's_barrier':
            k, rd, wr = 'bar', [], []
        elif op.startswith('s_'):
            k, rd, wr = 'salu', rest, first
        else:
            raise ValueError(text)
        self.kind, self.rd, self.wr = k, rd, wr
        self.trans = op.replace('_e32', '').replace('_e64', '') in TRANS
        self.dpp = 'dpp' in op or 'quad_perm' in self.text or 'row_' in self.text
        self.isdma = k == 'vm' and ('m0', 0) in rd
        self.wide_store = k == 'vm' and 'store' in op and ('x4' in op or 'x3' in op)
        self.store_data = (R[0] if op.startswith('buffer') else R[1]) if self.wide_store else []

    def cost(self):
        if self.kind == 'label':
            return 0
        return 2 if self.trans else 1

    def lines(self):
        out = []
        if self.auto_lg is not None or self.auto_vm is not None:
            out.append(_waitstr(self.auto_vm, self.auto_lg))
        n = self.nops
        while n > 0:
            k = min(n, 16)
            out.append(f's_nop {k - 1}')
            n -= k
        out.append(self.text)
        return out


def _waitstr(vm, lg):
    s = 's_waitcnt'
    if vm is not None:
        s += f' vmcnt({min(vm, 63)})'
    if lg is not None:
        s += f' lgkmcnt({min(lg, 15)})'
    return s


class W:
    kind = 'wait'
    trans = False

    def __init__(self, lg=None, vm=None):
        self.lg, self.vm = lg, vm
        self.nlg = None
        self.nvm = None
        self.nops = 0

    def cost(self):
        return 1

    def lines(self):
        vm = self.nvm if self.vm is not None else None
        lg = self.nlg if self.lg is not None else None
        if self.vm is not None and vm is None:
            vm = 63
        if self.lg is not None and lg is None:
            lg = 15
        return [_waitstr(vm, lg)]


def _res(x, env):
    return x(env) if callable(x) else x


def _match(want, tag):
    if want == 'all':
        return True
    if isinstance(want, (list, set)):
        return tag in want
    return tag == want


class Checker:
    def __init__(self, auto=True, verbose=False):
        self.lgq, self.vmq = [], []
        self.pos = 0
        self.lastw = {}
        self.lastC = {}
        self.lastst = {}
        self.changed = False
        self.auto = auto
        self.lds = {}
        self.errors = []
        self.barriers = 0

    def _retire(self, q, n):
        while len(q) > n:
            ins, tag, env = q.pop(0)
            if ins.lds_wr is not None:
                reg, gen = _res(ins.lds_wr, env)
                st = self.lds.setdefault(reg, {})
                st['pend'] = st.get('pend', 0) - 1
                st['wr_done_bar'] = self.barriers
            if ins.lds_rd is not None:
                reg, gen = _res(ins.lds_rd, env)
                st = self.lds.setdefault(reg, {})
                st['rdpend'] = st.get('rdpend', 0) - 1
                st['rd_done_bar'] = self.barriers

    def _need(self, q, regs):
        idx = -1
        for i, (ins, tag, env) in enumerate(q):
            if set(ins.wr) & regs:
                idx = i
        return None if idx < 0 else len(q) - 1 - idx

    def step(self, x, env):
        if isinstance(x, W):
            for q, want, attr in ((self.lgq, x.lg, 'nlg'), (self.vmq, x.vm, 'nvm')):
                if want is None:
                    continue
                want = _res(want, env)
                idx = -1
                for i, (ins, tag, e) in enumerate(q):
                    if _match(want, tag):
                        idx = i
                n = None if idx < 0 else len(q) - 1 - idx
                if attr == 'nlg' and n is not None and any(ins.kind == 'smem' for ins, _, _ in q):
                    n = 0
                old = getattr(x, attr)
                if n is not None and (old is None or n < old):
                    setattr(x, attr, n)
                    self.changed = True
                cur = getattr(x, attr)
                if cur is not None:
                    self._retire(q, min(cur, 15 if attr == 'nlg' else 63))
            self.pos += 1
            return
        if x.kind == 'label':
            return
        if x.op == 's_waitcnt':
            m = re.search(r'vmcnt\((\d+)\)', x.text)
            if m:
                self._retire(self.vmq, int(m.group(1)))
            m = re.search(r'lgkmcnt\((\d+)\)', x.text)
            if m:
                self._retire(self.lgq, int(m.group(1)))
            self.pos += 1
            return
        touched = set(x.rd) | set(x.wr)
        pre = 0
        for q, attr in ((self.lgq, 'auto_lg'), (self.vmq, 'auto_vm')):
            n = self._need(q, touched)
            if n is not None:
                if attr == 'auto_lg' and any(ins.kind == 'smem' for ins, _, _ in q):
                    n = 0
                old = getattr(x, attr)
                if old is None or n < old:
                    setattr(x, attr, n)
                    self.changed = True
            cur = getattr(x, attr)
            if cur is not None:
                self._retire(q, min(cur, 15 if attr == 'auto_lg' else 63))
                pre = 1
        self.pos += pre
        need = 0

        def req(prodpos, ws):
            nonlocal need
            need = max(need, ws - (self.pos - prodpos - 1))

        for r in x.rd:
            lw = self.lastw.get(r)
            if not lw:
                continue
            p, pp = lw
            if p.kind == 'mfma':
                big = p.passes == 8
                if x.kind == 'mfma':
                    if r in x.srcAB:
                        req(pp, 12 if big else 8)
                    if r in x.srcC and not (x.srcC == p.wr and x.passes == p.passes):
                        req(pp, 10 if big else 6)
                else:
                    req(pp, 12 if big else 8)
            elif p.kind == 'valu':
                if r[0] in 'va':
                    if x.kind == 'mfma':
                        req(pp, 2)
                    elif x.op.startswith('v_permlane') or x.dpp:
                        req(pp, 2)
                    elif x.op.startswith('v_readfirstlane') or x.op.startswith('v_readlane'):
                        req(pp, 1)
                    if p.trans and not x.trans:
                        req(pp, 1)
                else:
                    if x.kind == 'valu':
                        req(pp, 2)
                    elif x.kind == 'vm':
                        req(pp, 5)
                    elif x.kind in ('salu', 'smem'):
                        req(pp, 1)
            elif p.kind == 'salu':
                if r == ('m0', 0) and x.isdma:
                    req(pp, 1)
        for r in x.wr:
            lw = self.lastw.get(r)
            if lw and lw[0].kind == 'mfma' and x.kind != 'mfma':
                req(lw[1], 12 if lw[0].passes == 8 else 8)
            if lw and lw[0].kind == 'mfma' and x.kind == 'mfma' and lw[0].passes != x.passes:
                req(lw[1], 12)
            lc = self.lastC.get(r)
            if lc and x.kind == 'valu':
                req(lc[1], 7 if lc[0].passes == 8 else 3)
            ls = self.lastst.get(r)
            if ls is not None:
                req(ls, 2)
        if need > x.nops:
            x.nops = need
            self.changed = True
        self.pos += x.nops
        if x.op == 's_nop':
            self.pos += int(x.text.split()[1])
        if x.lds_rd is not None:
            reg, gen = _res(x.lds_rd, env)
            st = self.lds.setdefault(reg, {})
            private = isinstance(reg, tuple) and reg[0] == 'priv'
            if st.get('gen') != gen:
                self.errors.append(f'LDS read of {reg} gen {gen} but holds {st.get("gen")}: {x.text}')
            elif st.get('pend', 0) > 0 or (not private and st.get('wr_done_bar', -1) >= self.barriers):
                self.errors.append(f'LDS read of {reg} gen {gen} not yet visible: {x.text}')
            st['rdpend'] = st.get('rdpend', 0) + 1
        if x.lds_wr is not None:
            reg, gen = _res(x.lds_wr, env)
            st = self.lds.setdefault(reg, {})
            private = isinstance(reg, tuple) and reg[0] == 'priv'
            if st.get('gen') != gen:
                if st.get('rdpend', 0) > 0 or (not private and st.get('rd_done_bar', -1) >= self.barriers):
                    self.errors.append(f'LDS overwrite of {reg} (gen {st.get("gen")} -> {gen}) before readers done: {x.text}')
                st['gen'] = gen
            st['pend'] = st.get('pend', 0) + 1
        for reg in _res(x.alias, env):
            st = self.lds.get(reg, {})
            if st.get('rdpend', 0) > 0 or st.get('rd_done_bar', -1) >= self.barriers or st.get('pend', 0) > 0 or st.get('wr_done_bar', -1) >= self.barriers:
                self.errors.append(f'LDS alias {reg} still in use: {x.text}')
        if x.kind == 'bar':
            self.barriers += 1
        for r in x.wr:
            self.lastw[r] = (x, self.pos)
        for r in x.srcC:
            self.lastC[r] = (x, self.pos)
        for r in x.store_data:
            self.lastst[r] = self.pos
        if x.kind in ('ds', 'smem'):
            self.lgq.append((x, _res(x.tag, env), env))
        elif x.kind == 'vm':
            self.vmq.append((x, _res(x.tag, env), env))
        self.pos += 1


def resolve(traces):
    for it in range(20):
        changed = False
        errs = []
        for tr in traces:
            c = Checker()
            for x, env in tr():
                c.step(x, env)
            changed |= c.changed
            errs += c.errors
        if not changed:
            return errs
    raise RuntimeError('no fixed point')


class Sched:
    def __init__(self, mfmas, budget):
        self.m = list(mfmas)
        self.budget = budget
        self.mem = [[] for _ in self.m]
        self.oth = [[] for _ in self.m]
        self.tail = [[] for _ in self.m]
        self.locked = set()

    def load(self, g):
        return sum(x.cost() for x in self.mem[g] + self.oth[g] + self.tail[g])

    def put(self, g, x, where=None):
        if isinstance(x, (list, tuple)):
            for y in x:
                self.put(g, y, where)
            return
        if where is None:
            where = 'mem' if x.kind in ('ds', 'vm') else 'oth'
        getattr(self, where)[g].append(x)

    def before(self, g, x):
        self.put(g - 1, x, 'tail')

    def stream(self, items, g0, g1, budget=None, even=True):
        budget = budget or self.budget
        items = list(items)
        gaps = [g for g in range(g0, g1) if g not in self.locked]
        free = [max(0, budget - self.load(g)) for g in gaps]
        tot = sum(x.cost() for x in items)
        cap = sum(free)
        i = 0
        placed = 0
        cum = 0
        for gi, g in enumerate(gaps):
            cum += free[gi]
            target = tot * cum / cap if (even and cap > 0) else tot
            room = free[gi]
            while i < len(items) and items[i].cost() <= room and placed + items[i].cost() <= target + 0.999:
                self.put(g, items[i], 'oth')
                room -= items[i].cost()
                placed += items[i].cost()
                i += 1
        rest = items[i:]
        return rest

    def window(self, items, budget=None):
        budget = budget or self.budget
        n = len(items)
        late = [0] * n
        cur = 1 << 30
        for i in range(n - 1, -1, -1):
            cur = min(cur, items[i][2])
            late[i] = cur
        i = 0
        for g in range(len(self.m)):
            while i < n and items[i][1] <= g:
                x = items[i][0]
                room = budget - self.load(g)
                if (g not in self.locked and x.cost() <= room) or late[i] <= g:
                    self.put(g, x, 'mem' if (x.kind in ('ds', 'vm') and not self.oth[g]) else 'oth')
                    i += 1
                else:
                    break
            if i < n:
                assert late[i] > g, ('window violated', items[i][0].text, g)
        return [it[0] for it in items[i:]]

    def extend(self, mfmas):
        self.m += mfmas
        for a in (self.mem, self.oth, self.tail):
            a += [[] for _ in mfmas]

    def est_cycles(self):
        t = 0
        for g, m in enumerate(self.m):
            base = 4 * m.passes
            t += max(base, 8 + 4 * self.load(g))
        return t

    def flat(self):
        out = []
        for g, m in enumerate(self.m):
            out.append(m)
            out += self.mem[g] + self.oth[g] + self.tail[g]
        return out


def render(insts):
    out = []
    for x in insts:
        for l in x.lines():
            out.append(l if (l.endswith(':') or l.startswith('.')) else '  ' + l)
    return '\n'.join(out) + '\n'


def stats(insts, name=''):
    n = sum(getattr(x, 'nops', 0) for x in insts)
    a = sum(1 for x in insts if getattr(x, 'auto_lg', None) is not None or getattr(x, 'auto_vm', None) is not None)
    return f'{name}: {len(insts)} insts, {n} pad states, {a} auto waits'
```

```python
import sys, math, struct
from asmlib import *

NAME = 'parallel_sum__compressed_kv_cla__glu_gated_glu__prompt'
XN_OFF = 0
ACT_OFF = 2 << 20
ACT_TILE = 172 * 1024
KV_OFF = 32 << 20
FLAG_OFF = 64 << 20
STAMP_OFF = FLAG_OFF + 65536
WS_SIZE = STAMP_OFF + (1 << 20)
OOB = 0x40000000
LDS_BYTES = 163840

def f32(x):
    return '0x%08x' % struct.unpack('<I', struct.pack('<f', x))[0]

S_X, S_CKV, S_WQ, S_WUK, S_WUV, S_WO, S_WGU, S_WD, S_OUT, S_WS, S_DBG = [32 + 4 * i for i in range(11)]
def srd(b): return f's[{b}:{b+3}]'
sW, sH, sJ, sB = 76, 77, 78, 79
sT0, sT1, sT2, sT3, sT4, sT5 = 80, 81, 82, 83, 84, 85
sA, sBb, sC, sD, sE, sF = 86, 87, 88, 89, 90, 91
sCNT, sPASS = 92, 93
sRET = 94
sMK = 96
sSTAMP = 100

def vr(b, n=4): return f'v[{b}:{b+n-1}]'
def ar(b, n=4): return f'a[{b}:{b+n-1}]'

class Atom:
    kind = 'salu'
    def __init__(self, items):
        self.items = items
        self.text = items[0].text
    def cost(self):
        return sum(x.cost() for x in self.items)


class Gen:
    def __init__(self, stop=None, stamps=False):
        self.stop, self.stamps = stop, stamps
        self.blocks = {}
        self.order = []
        self.nstamp = 0

    def block(self, name, insts):
        out = []
        for x in insts:
            if isinstance(x, str):
                out += [I(l) for l in x.strip().split('\n') if l.strip()]
            elif isinstance(x, list):
                out += x
            else:
                out.append(x)
        self.blocks[name] = out
        self.order.append(name)

    def stamp(self):
        if not self.stamps:
            return []
        k = self.nstamp
        self.nstamp += 1
        return [I(f's_memtime s[{sSTAMP}:{sSTAMP+1}]'), I('s_waitcnt lgkmcnt(0)'),
                I(f'v_mov_b32 v30, s{sSTAMP}'),
                I(f's_memrealtime s[{sSTAMP}:{sSTAMP+1}]'), I('s_waitcnt lgkmcnt(0)'),
                I(f'v_mov_b32 v31, s{sSTAMP}'),
                I(f'buffer_store_dwordx2 v[30:31], v29, {srd(S_WS)}, 0 offen offset:{8*k}', tag='stamp')]

    def prologue(self):
        L = []
        L.append(f'''
s_cmp_ge_u32 s2, 256
s_cbranch_scc1 L_end
s_load_dwordx16 s[4:19], s[0:1], 0
s_load_dwordx8 s[20:27], s[0:1], 64
s_load_dwordx2 s[28:29], s[0:1], 96
v_lshrrev_b32 v1, 6, v0
v_and_b32 v0, 63, v0
v_readfirstlane_b32 s{sW}, v1
s_getpc_b64 s[30:31]
L_pc:
v_lshlrev_b32 v2, 7, v0
s_lshl_b32 s{sT0}, s{sW}, 13
v_add_u32 v2, s{sT0}, v2''')
        for k in range(self.code_pf):
            L.append(f'v_min_u32 v3, L_pad-L_pc, v2')
            L.append(I(f'global_load_dword v{80+k}, v3, s[30:31]', tag='pf'))
            L.append(f'v_add_u32 v2, 0x8000, v2')
        L.append(f'''
s_mov_b32 s{sB}, s2
s_and_b32 s{sT0}, s2, 7
s_lshr_b32 s{sT1}, s2, 3
s_and_b32 s{sT2}, s{sT1}, 3
s_lshl_b32 s{sH}, s{sT0}, 2
s_add_u32 s{sH}, s{sH}, s{sT2}
s_lshr_b32 s{sJ}, s{sT1}, 2
s_waitcnt lgkmcnt(0)''')
        def mk(b, p, n):
            return f's_mov_b32 s{b}, s{p}\ns_mov_b32 s{b+1}, s{p+1}\ns_mov_b32 s{b+2}, {n}\ns_mov_b32 s{b+3}, 0x00020000'
        L.append(mk(S_X, 4, 2 << 20)); L.append(mk(S_CKV, 6, 2 << 20))
        L.append(mk(S_WUK, 10, 4 << 20)); L.append(mk(S_WUV, 12, 4 << 20))
        L.append(f'''
s_lshl_b32 s{sT0}, s2, 13
s_lshl_b32 s{sT1}, s{sW}, 11
s_add_u32 s{sT0}, s{sT0}, s{sT1}
v_lshlrev_b32 v4, 5, v0''')
        L.append(I(f'buffer_load_dwordx4 v[40:43], v4, {srd(S_X)}, s{sT0} offen', tag='lnx'))
        L.append(I(f'buffer_load_dwordx4 v[44:47], v4, {srd(S_X)}, s{sT0} offen offset:16', tag='lnx'))
        L.append(f'''
v_lshrrev_b32 v5, 3, v0
v_and_b32 v6, 7, v0
v_xor_b32 v7, v5, v6
v_lshlrev_b32 v7, 4, v7
v_lshl_add_u32 v{self.vCK}, v5, 10, v7
v_lshrrev_b32 v7, 1, v5
v_and_b32 v7, 3, v7
v_lshlrev_b32 v7, 1, v7
v_xor_b32 v7, v7, v6
v_lshlrev_b32 v7, 4, v7
v_lshrrev_b32 v8, 2, v5
v_lshlrev_b32 v8, 3, v8
v_and_b32 v9, 3, v5
v_add_u32 v8, v8, v9
v_lshl_add_u32 v{self.vWD}, v8, 13, v7
v_lshl_add_u32 v{self.vW3}, v5, 10, v7''')
        L.append(f'''
s_lshl_b32 s{sA}, s{sJ}, 18
s_lshl_b32 s{sT0}, s{sW}, 16
s_add_u32 s{sA}, s{sA}, s{sT0}
s_lshl_b32 s{sBb}, s{sH}, 8
s_and_b32 s{sT0}, s{sW}, 1
s_lshl_b32 s{sT0}, s{sT0}, 7
s_add_u32 s{sBb}, s{sBb}, s{sT0}
s_lshr_b32 s{sT0}, s{sW}, 1
s_lshl_b32 s{sT0}, s{sT0}, 18
s_add_u32 s{sBb}, s{sBb}, s{sT0}
s_lshl_b32 s{sC}, s{sW}, 13
s_and_b32 s{sT0}, s{sW}, 1
s_lshl_b32 s{sT0}, s{sT0}, 13
s_lshr_b32 s{sT1}, s{sW}, 1
s_lshl_b32 s{sT1}, s{sT1}, 12
s_add_u32 s{sD}, s{sT0}, s{sT1}''')
        L.append(self.kv_dma(0)); L.append(self.kv_dma(1))
        L.append(mk(S_WQ, 8, 4 << 20)); L.append(mk(S_WO, 14, 4 << 20))
        L.append(mk(S_WD, 22, 1376 * 1024)); L.append(mk(S_OUT, 24, 2 << 20))
        L.append(mk(S_DBG, 26, 256)); L.append(mk(S_WS, 28, WS_SIZE))
        L.append(f'''
s_cmp_lt_u32 s{sW}, 2
s_cselect_b32 s{S_WGU}, s18, s20
s_cselect_b32 s{S_WGU+1}, s19, s21
s_mov_b32 s{S_WGU+2}, {512*2752}
s_mov_b32 s{S_WGU+3}, 0x00020000''')
        if self.stamps:
            L.append(f's_lshl_b32 s{sT0}, s2, 2\ns_add_u32 s{sT0}, s{sT0}, s{sW}\ns_lshl_b32 s{sT0}, s{sT0}, 8\n'
                     f's_add_u32 s{sT0}, s{sT0}, {STAMP_OFF}\nv_mov_b32 v29, s{sT0}')
        L.append(self.stamp())
        L.append(f'''
s_lshl_b32 s{sT0}, s{sH}, 7
s_lshl_b32 s{sT1}, s{sJ}, 2
s_add_u32 s{sT0}, s{sT0}, s{sT1}
s_add_u32 s{sT0}, s{sT0}, {FLAG_OFF}
s_lshl_b32 s{sT1}, s{sJ}, 7
s_lshl_b32 s{sT2}, s{sH}, 2
s_add_u32 s{sT3}, s{sT1}, s{sT2}
s_add_u32 s{sT3}, s{sT3}, {FLAG_OFF + 4096}
s_add_u32 s{sT4}, s{sT3}, 1024
v_mov_b32 v10, 0
v_mov_b32 v{self.vFL}, {OOB}
v_cmp_eq_u32 vcc, 0, v0
s_cmp_eq_u32 s{sW}, 0
s_cselect_b64 vcc, vcc, 0
v_cndmask_b32 v{self.vFL}, v{self.vFL}, v10, vcc''')
        for s in (sT0, sT3, sT4):
            L.append(I(f'buffer_store_dword v10, v{self.vFL}, {srd(S_WS)}, s{s} offen sc1', tag='clr'))
        L.append(W(vm='lnx'))
        for i in range(8):
            L.append(f'v_lshlrev_b32 v{48+2*i}, 16, v{40+i}\nv_and_b32 v{49+2*i}, 0xffff0000, v{40+i}')
        L.append('v_add_f32 v11, v48, v49\nv_add_f32 v12, v50, v51')
        for i in range(2, 8):
            L.append(f'v_add_f32 v11, v11, v{48+2*i}\nv_add_f32 v12, v12, v{49+2*i}')
        L.append('v_add_f32 v11, v11, v12')
        def red32(r, t):
            return f'''
v_add_f32_dpp v{r}, v{r}, v{r} quad_perm:[1,0,3,2] row_mask:0xf bank_mask:0xf
v_add_f32_dpp v{r}, v{r}, v{r} quad_perm:[2,3,0,1] row_mask:0xf bank_mask:0xf
v_add_f32_dpp v{r}, v{r}, v{r} row_half_mirror row_mask:0xf bank_mask:0xf
v_add_f32_dpp v{r}, v{r}, v{r} row_mirror row_mask:0xf bank_mask:0xf
v_mov_b32 v{t}, v{r}
v_permlane16_swap_b32 v{r}, v{t}
v_add_f32 v{r}, v{r}, v{t}'''
        L.append(red32(11, 12))
        L.append(f'v_mul_f32 v11, {f32(1/512)}, v11')
        for i in range(16):
            L.append(f'v_sub_f32 v{64+i}, v{48+i}, v11')
        L.append('v_mul_f32 v13, v64, v64\nv_mul_f32 v12, v65, v65')
        for i in range(1, 8):
            L.append(f'v_fmac_f32 v13, v{64+2*i}, v{64+2*i}\nv_fmac_f32 v12, v{65+2*i}, v{65+2*i}')
        L.append('v_add_f32 v13, v13, v12')
        L.append(red32(13, 12))
        def rnd(r):
            return f'v_cvt_pk_bf16_f32 v{r}, v{r}, v{r}\nv_lshlrev_b32 v{r}, 16, v{r}'
        L.append(f'v_mul_f32 v13, {f32(1/512)}, v13')
        L.append(rnd(13))
        L.append(f'v_add_f32 v13, {f32(1e-5)}, v13')
        L.append(rnd(13))
        L.append('v_sqrt_f32 v13, v13')
        L.append(rnd(13))
        L.append('v_rcp_f32 v13, v13')
        L.append(rnd(11))
        for i in range(8):
            L.append(f'''v_sub_f32 v{48+2*i}, v{48+2*i}, v11
v_sub_f32 v{49+2*i}, v{49+2*i}, v11
v_cvt_pk_bf16_f32 v{40+i}, v{48+2*i}, v{49+2*i}''')
        for i in range(8):
            L.append(f'''v_lshlrev_b32 v{48+2*i}, 16, v{40+i}
v_and_b32 v{49+2*i}, 0xffff0000, v{40+i}
v_mul_f32 v{48+2*i}, v{48+2*i}, v13
v_mul_f32 v{49+2*i}, v{49+2*i}, v13
v_cvt_pk_bf16_f32 v{40+i}, v{48+2*i}, v{49+2*i}''')
        L.append(f'''
v_lshrrev_b32 v5, 5, v0
s_lshl_b32 s{sT0}, s{sW}, 1
v_add_u32 v5, s{sT0}, v5
v_mul_u32_u24 v5, 1040, v5
v_and_b32 v6, 31, v0
v_lshl_add_u32 v5, v6, 5, v5
v_add_u32 v5, 0x20000, v5''')
        L.append(I('ds_write_b128 v5, v[40:43]', lds_wr=('s4', 'ln'), tag='lnw'))
        L.append(I('ds_write_b128 v5, v[44:47] offset:16', lds_wr=('s4', 'ln'), tag='lnw'))
        L.append(f'''
v_and_b32 v6, 7, v0
v_lshrrev_b32 v7, 3, v0
v_mul_u32_u24 v5, 1040, v6
v_lshl_add_u32 v5, v7, 4, v5
s_lshl_b32 s{sT0}, s{sW}, 8
s_add_u32 s{sT0}, s{sT0}, 0x20000
v_add_u32 v5, s{sT0}, v5
v_lshlrev_b32 v7, 8, v7
v_lshl_add_u32 v7, v6, 4, v7
s_lshr_b32 s{sT0}, s2, 1
s_lshl_b32 s{sT0}, s{sT0}, 14
s_and_b32 s{sT1}, s2, 1
s_lshl_b32 s{sT1}, s{sT1}, 7
s_add_u32 s{sT0}, s{sT0}, s{sT1}
s_lshl_b32 s{sT1}, s{sW}, 12
s_add_u32 s{sT0}, s{sT0}, s{sT1}''')
        L.append(W(lg='lnw')); L.append('s_barrier')
        L.append(I('ds_read_b128 v[40:43], v5', lds_rd=('s4', 'ln'), tag='lnr'))
        L.append(I('ds_read_b128 v[44:47], v5 offset:128', lds_rd=('s4', 'ln'), tag='lnr'))
        L.append(self.kv_addr())
        L.append(W(lg='lnr'))
        L.append(I(f'buffer_store_dwordx4 v[40:43], v7, {srd(S_WS)}, s{sT0} offen sc1', tag='xn'))
        L.append(I(f'buffer_store_dwordx4 v[44:47], v7, {srd(S_WS)}, s{sT0} offen offset:2048 sc1', tag='xn'))
        self.block('pro', L)

    vCK, vWD, vW3, vFL = 14, 15, 16, 17
    vTK = (18, 19)
    vWR = (20, 21, 22, 23)
    vKS, vVS = 24, 25
    code_pf = 3

    def kv_addr(self):
        t0, t1 = self.vTK
        w = self.vWR
        return f'''
v_and_b32 v5, 15, v0
v_lshrrev_b32 v6, 4, v0
v_and_b32 v8, 7, v0
v_xor_b32 v8, v8, v6
v_lshlrev_b32 v8, 4, v8
v_lshl_add_u32 v8, v5, 7, v8
s_and_b32 s{sT1}, s{sW}, 1
s_lshl_b32 s{sT1}, s{sT1}, 14
v_add_u32 v{t0}, s{sT1}, v8
v_xor_b32 v{t1}, 64, v{t0}
v_lshrrev_b32 v8, 2, v0
v_lshrrev_b32 v9, 3, v0
v_and_b32 v9, 3, v9
v_lshlrev_b32 v9, 5, v9
v_lshl_add_u32 v8, v8, 7, v9
v_and_b32 v9, 3, v0
v_lshl_add_u32 v8, v9, 3, v8
s_lshr_b32 s{sT1}, s{sW}, 1
s_lshl_b32 s{sT1}, s{sT1}, 13
s_add_u32 s{sT1}, s{sT1}, 0x10000
v_add_u32 v{w[0]}, s{sT1}, v8
v_xor_b32 v{w[1]}, 32, v{w[0]}
v_xor_b32 v{w[2]}, 64, v{w[0]}
v_xor_b32 v{w[3]}, 0x60, v{w[0]}
v_and_b32 v8, 1, v6
v_lshrrev_b32 v9, 1, v6
v_lshlrev_b32 v10, 10, v8
v_lshl_add_u32 v10, v9, 9, v10
v_lshrrev_b32 v11, 3, v5
v_lshl_add_u32 v10, v11, 8, v10
v_and_b32 v11, 7, v5
v_lshl_add_u32 v{self.vKS}, v11, 4, v10
v_lshlrev_b32 v10, 12, v9
v_lshl_add_u32 v10, v8, 9, v10
v_lshl_add_u32 v{self.vVS}, v5, 4, v10'''

    def kv_dma(self, c):
        p = c & 1
        L = []
        for i in range(8):
            L.append(I(f's_add_u32 m0, s{sC}, {p*32768 + i*1024}'))
            L.append(I(f's_add_u32 s{sT5}, s{sA}, {i*8192 + c*128}'))
            L.append(I(f'buffer_load_dwordx4 v{self.vCK}, {srd(S_CKV)}, s{sT5} offen lds', lds_wr=(f's{p}', ('kv', c)), tag=('kv', c)))
        for mat, S in ((0, S_WUK), (1, S_WUV)):
            for m in range(4):
                krow = 64 * c + 16 * (m & 1) + 4 * (m >> 1)
                L.append(I(f's_add_u32 m0, s{sD}, {65536 + p*32768 + mat*16384 + m*1024}'))
                L.append(I(f's_add_u32 s{sT5}, s{sBb}, {krow*8192}'))
                L.append(I(f'buffer_load_dwordx4 v{self.vWD}, {srd(S)}, s{sT5} offen lds', lds_wr=(f's{2+p}', ('kv', c)), tag=('kv', c)))
        return L

    def kv_acc(self, kind, i, jj):
        n = (i * 8 + jj) if kind == 'K' else 32 + (jj * 4 + i)
        return vr(32 + 4 * n) if n < 56 else ar(224 + 4 * (n - 56))

    def kv_reads(self, s):
        c, sl, p = s >> 1, s & 1, s & 1
        st = c & 1
        L = []
        tok = [I(f'ds_read_b128 {ar(64*p + 4*jj)}, v{self.vTK[sl]} offset:{st*32768 + jj*2048}',
                 lds_rd=(f's{st}', ('kv', c)), tag=('kvr', s)) for jj in range(8)]
        wr = []
        for mat in range(2):
            for i in range(4):
                for hf in range(2):
                    wr.append(I(f'ds_read_b64_tr_b16 {ar(64*p + 32 + 16*mat + 4*i + 2*hf, 2)}, v{self.vWR[i]} offset:{st*32768 + mat*16384 + sl*4096 + hf*2048}',
                                lds_rd=(f's{2+st}', ('kv', c)), tag=('kvr', s)))
        return wr[:2] + tok + wr[2:]

    def kv_phase(self):
        L = [W(vm=('kv', 0)), I('s_barrier')] + self.kv_reads(0)
        L += self.stamp()
        L.append(W(lg=('kvr', 0)))
        self.block('kv_pre', L)
        M = []
        for s in range(16):
            p = s & 1
            for i in range(4):
                for jj in range(8):
                    d = self.kv_acc('K', i, jj)
                    M.append(I(f'v_mfma_f32_16x16x32_bf16 {d}, {ar(64*p + 32 + 4*i)}, {ar(64*p + 4*jj)}, {d if s else 0}'))
            for jj in range(8):
                for i in range(4):
                    d = self.kv_acc('V', i, jj)
                    M.append(I(f'v_mfma_f32_16x16x32_bf16 {d}, {ar(64*p + 4*jj)}, {ar(64*p + 48 + 4*i)}, {d if s else 0}'))
        S = Sched(M, 2)
        for s in range(16):
            g0 = 64 * s
            c = s >> 1
            if s & 1 and c < 7:
                vmw = [('kv', c + 1)] + (['xn', 'clr'] if c == 1 else [])
                S.put(g0, [W(vm=vmw), I('s_barrier')], 'oth')
                if c == 1:
                    S.put(g0 + 62, [I(f's_and_b32 s{sT0}, s2, 1'), I(f's_lshl_b32 s{sT0}, s{sT0}, 7')], 'oth')
                    S.put(g0 + 63, [I('v_mov_b32 v10, 1')], 'oth')
                    S.put(g0 + 64, I(f'buffer_atomic_add v10, v{self.vFL}, {srd(S_DBG)}, s{sT0} offen sc1', tag='arr'))
            if s < 15:
                for k, r in enumerate(self.kv_reads(s + 1)):
                    S.put(g0 + 2 + 2 * k, r)
                S.before(g0 + 64, W(lg=('kvr', s + 1)))
            if s & 1 and c + 2 < 8:
                d = self.kv_dma(c + 2)
                for k in range(16):
                    g = g0 + 1 + 4 * k
                    S.put(g, d[3*k:3*k+2], 'oth')
                    S.put(g + 2, d[3*k+2])
        self.kvS = S
        return S

    def kv_epilogue(self):
        G = []
        tmp = [0]
        def pack(t0, t1):
            out = []
            b = 4 + 4 * (tmp[0] & 1)
            tmp[0] += 1
            for k, t in enumerate((t0, t1)):
                base = int(t[2:t.index(':')])
                if t[0] == 'a':
                    out += [I(f'v_accvgpr_read_b32 v{2+q}, a{base+q}') for q in range(2)]
                    out.append(I(f'v_cvt_pk_bf16_f32 v{b+2*k}, v2, v3'))
                    out += [I(f'v_accvgpr_read_b32 v{2+q}, a{base+2+q}') for q in range(2)]
                    out.append(I(f'v_cvt_pk_bf16_f32 v{b+2*k+1}, v2, v3'))
                else:
                    out.append(I(f'v_cvt_pk_bf16_f32 v{b+2*k}, v{base}, v{base+1}'))
                    out.append(I(f'v_cvt_pk_bf16_f32 v{b+2*k+1}, v{base+2}, v{base+3}'))
            return out, b
        for p in range(2):
            for jj in range(8):
                o, b = pack(self.kv_acc('K', 2*p, jj), self.kv_acc('K', 2*p+1, jj))
                o.append(I(f'buffer_store_dwordx4 {vr(b)}, v{self.vKS}, {srd(S_WS)}, s{self.sKS[jj>>1]} offen offset:{(jj&1)*128 + p*2048} sc1', tag='kvst'))
                G.append(o)
        for m in range(4):
            for i in range(4):
                o, b = pack(self.kv_acc('V', i, 2*m), self.kv_acc('V', i, 2*m+1))
                o.append(I(f'buffer_store_dwordx4 {vr(b)}, v{self.vVS}, {srd(S_WS)}, s{self.sVS[m]} offen offset:{(i&1)*256 + (i>>1)*1024} sc1', tag='kvst'))
                G.append(o)
        setup = f'''
s_lshl_b32 s{sE}, s{sH}, 20
s_lshl_b32 s{sT0}, s{sJ}, 17
s_add_u32 s{sE}, s{sE}, s{sT0}
s_and_b32 s{sT0}, s{sW}, 1
s_lshl_b32 s{sT0}, s{sT0}, 16
s_add_u32 s{sE}, s{sE}, s{sT0}
s_add_u32 s{sE}, s{sE}, {KV_OFF}
s_lshr_b32 s{sT0}, s{sW}, 1
s_lshl_b32 s{sT1}, s{sT0}, 11
s_add_u32 s{sF}, s{sE}, s{sT1}
s_add_u32 s{sF}, s{sF}, 16384
s_lshl_b32 s{sT1}, s{sT0}, 12
s_add_u32 s{sE}, s{sE}, s{sT1}'''
        return [I(l) for l in setup.strip().split('\n')], G

    QRING = (4, 2, 0)
    vGU = (26, 27, 28)
    vGR = 1
    vLN = 12
    sXA, sXB, sQG, sGG, sGM = 4, 5, 6, 7, 8
    sKS = (10, 11, 12, 13)
    sVS = (14, 15, 16, 17)

    def poll(self, name, voff_setup, S, soff, cond):
        L = [I(f'L_{name}_spin:'), I(f's_mov_b32 s{sCNT}, 0x40000'), I(f'L_{name}_loop:'), I('s_sleep 2')]
        L.append(I(f'buffer_load_dword v13, v{voff_setup}, {srd(S)}, {soff} offen sc1', tag='poll'))
        L.append(I('s_waitcnt vmcnt(0)'))
        L += cond()
        L += [I(f's_cbranch_scc1 L_{name}_ok'), I(f's_sub_u32 s{sCNT}, s{sCNT}, 1'), I(f's_cmp_lg_u32 s{sCNT}, 0'),
              I(f's_cbranch_scc1 L_{name}_loop'), I(f's_branch L_{name}_ok')]
        self.outline.append((name, L))

    def qgu_setup(self):
        g0, g1, g2 = self.vGU
        L = f'''
v_lshlrev_b32 v{self.vLN}, 4, v0
s_sub_u32 s{sT0}, 15, s{sJ}
s_lshl_b32 s{sT0}, s{sT0}, 17
s_lshl_b32 s{sT1}, s{sW}, 15
s_add_u32 s{self.sXA}, s{sT0}, s{sT1}
s_lshl_b32 s{sT0}, s{sJ}, 17
s_add_u32 s{self.sXB}, s{sT0}, s{sT1}
s_mul_i32 s{self.sGG}, s{sH}, 96
s_and_b32 s{sT0}, s{sW}, 1
s_mul_i32 s{sT0}, s{sT0}, {32*2752}
s_add_u32 s{self.sGG}, s{self.sGG}, s{sT0}
s_mul_i32 s{self.sGM}, s{sW}, 3072
s_add_u32 s{self.sGM}, s{self.sGM}, 16384
'''
        for q, g in enumerate(self.vGU):
            L += f'''
v_add_u32 v4, {64*q}, v0
v_mul_u32_u24 v5, 10923, v4
v_lshrrev_b32 v5, 16, v5
v_mul_u32_u24 v6, 6, v5
v_sub_u32 v4, v4, v6
v_bfe_u32 v6, v5, 2, 2
v_lshlrev_b32 v6, 3, v6
v_lshrrev_b32 v7, 4, v5
v_lshl_add_u32 v6, v7, 2, v6
v_and_b32 v7, 3, v5
v_add_u32 v6, v6, v7
v_mul_u32_u24 v6, 2752, v6
v_lshl_add_u32 v{g}, v4, 4, v6
'''
        L += f'''
v_lshrrev_b32 v4, 2, v0
v_mul_u32_u24 v4, 96, v4
v_and_b32 v5, 3, v0
v_lshl_add_u32 v4, v5, 3, v4
v_add_u32 v{self.vGR}, {self.QRING[0]*32768 + 16384}, v4
'''
        for k in range(4):
            L += f's_add_u32 s{self.sKS[k]}, s{sE}, {(k&1)*8192 + (k>>1)*32768}\n'
            L += f's_add_u32 s{self.sVS[k]}, s{sF}, {(k&1)*8192 + (k>>1)*32768}\n'
        return [I(l) for l in L.strip().split('\n') if l.strip()]

    def qgu_dma(self, c):
        slot = self.QRING[c % 3]
        L = []
        for m in range(4):
            krow = 64 * c + 16 * (m & 1) + 4 * (m >> 1)
            L.append([I(f's_add_u32 m0, s{sD}, {slot*32768 + m*1024}'), I(f's_add_u32 s{sT5}, s{sBb}, {krow*8192}'),
                      I(f'buffer_load_dwordx4 v{self.vWD}, {srd(S_WQ)}, s{sT5} offen lds', lds_wr=(f's{slot}', ('qg', c)), tag=('qg', c))])
        for q in range(3):
            L.append([I(f's_add_u32 m0, s{self.sGM}, {slot*32768 + q*1024}'), I(f's_add_u32 s{sT5}, s{self.sGG}, {64*c*2752}'),
                      I(f'buffer_load_dwordx4 v{self.vGU[q]}, {srd(S_WGU)}, s{sT5} offen lds', lds_wr=(f's{slot}', ('qg', c)), tag=('qg', c))])
        return L

    def qgu_x(self, s):
        L = []
        for jj in range(4):
            base = self.sXA if jj < 2 else self.sXB
            L.append([I(f's_add_u32 s{sT4}, s{base}, {XN_OFF + (jj&1)*16384 + s*1024}'),
                      I(f'buffer_load_dwordx4 {ar(128 + 16*(s&3) + 4*jj)}, v{self.vLN}, {srd(S_WS)}, s{sT4} offen sc1', tag=('x', s))])
        return L

    def qgu_reads(self, s):
        c, sl, p = s >> 1, s & 1, s & 1
        slot = self.QRING[c % 3]
        R = []
        for i in self.QORDER:
            for hf in range(2):
                d = ar(64*p + 4*i + 2*hf, 2)
                if i < 8:
                    t = f'ds_read_b64_tr_b16 {d}, v{self.vWR[i&3]} offset:{(i>>2)*8192 + sl*4096 + hf*2048}'
                else:
                    mat, u = (i - 8) // 3, (i - 8) % 3
                    t = f'ds_read_b64_tr_b16 {d}, v{self.vGR} offset:{mat*6144 + sl*3072 + hf*1536 + u*32}'
                R.append(I(t, lds_rd=(f's{slot}', ('qg', c)), tag=('qr', s)))
        return R

    QORDER = [8, 11, 9, 12, 10, 13, 0, 1, 2, 3, 4, 5, 6, 7]

    def gemm_phases(self):
        self.outline = []
        S = self.kv_phase()
        setup, G = self.kv_epilogue()
        freed = []
        for p in range(2):
            for jj in range(8):
                freed += [(2*p)*8 + jj, (2*p+1)*8 + jj]
        for m in range(3):
            for i in range(4):
                freed += [32 + (2*m)*4 + i, 32 + (2*m+1)*4 + i]
        self.qacc = {}
        k = 0
        for i in self.QORDER:
            for jj in range(4):
                self.qacc[(i, jj)] = 32 + 4 * freed[k]
                k += 1
        M = []
        for s in range(16):
            p = s & 1
            for i in self.QORDER:
                for jj in range(4):
                    d = vr(self.qacc[(i, jj)])
                    M.append(I(f'v_mfma_f32_16x16x32_bf16 {d}, {ar(64*p + 4*i)}, {ar(128 + 16*(s&3) + 4*jj)}, {d if s else 0}'))
        S.extend(M)
        Q0 = 1024
        rest = S.stream(setup + self.qgu_setup(), 64*4, 64*8)
        assert not rest
        S.put(64*9 + 51, [I('v_and_b32 v4, 1, v0'), I('v_lshlrev_b32 v4, 7, v4')], 'oth')
        S.put(64*10 + 51, I(f'buffer_load_dword v13, v4, {srd(S_DBG)}, 0 offen sc1', tag='poll'))
        def cond():
            return [I(f'v_readlane_b32 s{sT0}, v13, 0'), I(f'v_readlane_b32 s{sT1}, v13, 1'),
                    I(f's_add_u32 s{sT0}, s{sT0}, s{sT1}'), I(f's_cmp_eq_u32 s{sT0}, 256')]
        S.put(64*12 + 50, [W(vm='poll')] + cond() + [I('s_cbranch_scc0 L_xn_spin'), I('L_xn_ok:')], 'oth')
        self.poll('xn', 4, S_DBG, '0', cond)
        items = []
        for grp in self.qgu_dma(0):
            items += [(x, 64*12 + 51, 64*13 + 40) for x in grp]
        for s in range(3):
            for grp in self.qgu_x(s):
                items += [(x, 64*12 + 51, 64*15) for x in grp]
        for c in (1, 2):
            for grp in self.qgu_dma(c):
                items += [(x, 64*13 + 1, 64*15) for x in grp]
        assert not S.window(items)
        adj = [I(f's_lshr_b32 s{sT0}, s{sW}, 1'), I(f's_lshl_b32 s{sT0}, s{sT0}, 13'),
               I(f's_sub_u32 s{sT0}, {self.QRING[0]*32768 - 65536}, s{sT0}')]
        adj += [I(f'v_add_u32 v{r}, s{sT0}, v{r}') for r in self.vWR]
        assert not S.window([(x, 64*14 + 50, 64*15 - 1) for x in adj])
        S.put(64*15, [W(vm=('qg', 0)), I('s_barrier')], 'oth')
        for k, r in enumerate(self.qgu_reads(0)):
            S.put(64*15 + 2 + 2*k, r)
        S.before(Q0, W(lg=('qr', 0), vm=('x', 0)))
        for s in range(16):
            g0 = Q0 + 56 * s
            c = s >> 1
            if s & 1 and c < 7:
                S.put(g0, [W(vm=('qg', c + 1)), I('s_barrier')], 'oth')
                delta = (self.QRING[(c+1) % 3] - self.QRING[c % 3]) * 32768
                for k, r in enumerate(self.vWR + (self.vGR,)):
                    op = f'v_add_u32 v{r}, {delta}, v{r}' if delta > 0 else f'v_subrev_u32 v{r}, {-delta}, v{r}'
                    S.put(g0 - 5 + k, I(op), 'oth')
            if s < 15:
                R = self.qgu_reads(s + 1)
                for k, r in enumerate(R):
                    S.put(g0 + 1 + (k * 7) // 4, r)
                S.before(g0 + 56, W(lg=('qr', s + 1), vm=('x', s + 1)))
        items = []
        for gi, grp in enumerate(G):
            if gi < 16:
                ready = 64*15 + (2*(gi >> 3) + 1) * 8 + (gi & 7)
            else:
                m, i = (gi - 16) >> 2, (gi - 16) & 3
                ready = 64*15 + 32 + (2*m + 1) * 4 + i
            late = Q0 + 2*gi - 1 if gi < 28 else Q0 + 110
            items += [(x, ready + 3, late) for x in grp]
        assert not S.window(items)
        for s in range(16):
            g0 = Q0 + 56 * s
            c = s >> 1
            items = []
            if s + 3 < 16:
                for grp in self.qgu_x(s + 3):
                    items += [(x, g0, g0 + 54) for x in grp]
            if s & 1 and c + 3 < 8:
                for grp in self.qgu_dma(c + 3):
                    items += [(x, g0 + 1, g0 + 54) for x in grp]
            assert not S.window(items)
        self.gS = S
        return S

    def qgu_epilogue(self):
        L = []
        L += [I(l) for l in f'''
s_sub_u32 s{sT0}, 15, s{sJ}
s_lshl_b32 s{sT0}, s{sT0}, 3
s_lshl_b32 s{sT1}, s{sW}, 1
s_add_u32 s{sT0}, s{sT0}, s{sT1}
s_mul_i32 s{self.sAC[0]}, s{sT0}, {ACT_TILE}
s_add_u32 s{self.sAC[0]}, s{self.sAC[0]}, {ACT_OFF}
s_lshl_b32 s{sT0}, s{sJ}, 3
s_add_u32 s{sT0}, s{sT0}, s{sT1}
s_mul_i32 s{self.sAC[1]}, s{sT0}, {ACT_TILE}
s_add_u32 s{self.sAC[1]}, s{self.sAC[1]}, {ACT_OFF}
s_mov_b32 s{sT3}, {f32(-math.log2(math.e))}'''.strip().split('\n')]
        for u in range(3):
            L += [I(l) for l in f'''
s_mul_i32 s{sT0}, s{sH}, 3
s_add_u32 s{sT0}, s{sT0}, {u}
s_lshr_b32 s{sT1}, s{sT0}, 1
s_lshl_b32 s{sT1}, s{sT1}, 10
s_and_b32 s{sT2}, s{sT0}, 1
s_lshl_b32 s{sT2}, s{sT2}, 3
s_add_u32 s{sT1}, s{sT1}, s{sT2}
s_add_u32 s{sT1}, s{sT1}, {128*1024}
s_cmp_lt_u32 s{sT0}, 86
s_cselect_b32 s{sT1}, s{sT1}, {OOB}'''.strip().split('\n')]
            for jj in range(4):
                g, up = self.qacc[(8 + u, jj)], self.qacc[(11 + u, jj)]
                for r in range(4): L.append(I(f'v_mul_f32 v{g+r}, s{sT3}, v{g+r}'))
                for r in range(4): L.append(I(f'v_exp_f32 v{g+r}, v{g+r}'))
                for r in range(4): L.append(I(f'v_add_f32 v{g+r}, 1.0, v{g+r}'))
                for r in range(4): L.append(I(f'v_rcp_f32 v{g+r}, v{g+r}'))
                for r in range(4): L.append(I(f'v_mul_f32 v{g+r}, v{g+r}, v{up+r}'))
                L.append(I(f'v_cvt_pk_bf16_f32 v{g}, v{g}, v{g+1}'))
                L.append(I(f'v_cvt_pk_bf16_f32 v{g+1}, v{g+2}, v{g+3}'))
                base = self.sAC[0] if jj < 2 else self.sAC[1]
                L.append(I(f's_add_u32 s{sT4}, s{base}, s{sT1}'))
                if jj & 1: L.append(I(f's_add_u32 s{sT4}, s{sT4}, {ACT_TILE}'))
                L.append(I(f'buffer_store_dwordx2 {vr(g, 2)}, v{self.vLN}, {srd(S_WS)}, s{sT4} offen sc1', tag='hst'))
        H = L
        L = [I(f's_mov_b32 s{sT3}, {f32(math.log2(math.e) / math.sqrt(128))}')]
        for ps in range(2):
            for P in range(4):
                for qt in range(2):
                    for k in range(2):
                        a = self.qacc[(2*P + k, 2*ps + qt)]
                        for r in range(4): L.append(I(f'v_mul_f32 v{a+r}, s{sT3}, v{a+r}'))
                        L.append(I(f'v_cvt_pk_bf16_f32 v{a}, v{a}, v{a+1}'))
                        L.append(I(f'v_cvt_pk_bf16_f32 v{a+1}, v{a+2}, v{a+3}'))
                for k in range(2):
                    x, y = self.qacc[(2*P + k, 2*ps)], self.qacc[(2*P + k, 2*ps + 1)]
                    for r in range(2): L.append(I(f'v_permlane16_swap_b32 v{x+r}, v{y+r}'))
                for qt in range(2):
                    for k in range(2):
                        a = self.qacc[(2*P + k, 2*ps + qt)]
                        for r in range(2):
                            L.append(I(f'v_accvgpr_write_b32 a{self.aQ[ps] + 4*(2*P + qt) + 2*k + r}, v{a+r}'))
        return H, L

    aQ = (192, 224)
    sAC = (36, 37)

    vO, vS, vP, vNM, vE = 32, (96, 128), 160, 176, 192
    vLT, vL, vLO, vHI, vNH, vA, vB, vCS, vZ = 200, 201, 202, 203, 204, 205, 206, 207, 212
    vX = 208
    sKB, sK, sV, sM, sU, sUD, sTHR, sN, sFL = 38, 39, 40, 41, 42, 43, 44, 45, 46
    LEAD = 12

    def att_dma(self, kind, odd, tagf):
        if kind == 'K':
            imm = 0 if odd else 32768
            off, so = 3, self.sK
        else:
            imm = (0x10000 | 32768 | 16384) if odd else 16384
            off, so = 2, self.sV
        reg = lambda e: (kind + str((e['t'] + off) & 3), e['t'] + off)
        al = lambda e: ['s' + str((e['t'] + off) & 3)]
        L = [I(f's_xor_b32 m0, s{self.sM}, {imm}')]
        for q in range(4):
            L.append(I(f'buffer_load_dwordx4 v{self.vLN}, {srd(S_WS)}, s{so} offen offset:{q*1024} sc1 lds', lds_wr=reg, tag=tagf, alias=al))
        return L

    def frag_read(self, m, odd, nxt=False):
        d = ar(4 * (m & 15))
        if m < 16:
            o = (not odd) if nxt else odd
            par = 0 if o else 1
            addr = self.vB if (nxt and not odd) else self.vA
            dt = 0 if nxt else -1
            imm = par * 32768 + 16384 + m * 1024
            reg = lambda e: ('V' + str((e['t'] + dt) & 3), e['t'] + dt)
        else:
            par = 0 if odd else 1
            addr = self.vB
            imm = par * 32768 + (m - 16) * 1024
            reg = lambda e: ('K' + str((e['t'] + 1) & 3), e['t'] + 1)
        dtag = 1 if nxt else 0
        return I(f'ds_read_b128 {d}, v{addr} offset:{imm}', lds_rd=reg, tag=lambda e: ('fr', e['t'] + dtag, m >> 3))

    def softmax(self, Sb):
        L = []
        pend = []
        for pr in range(16):
            t0, t1 = self.vE + 2 * (pr & 3), self.vE + 2 * (pr & 3) + 1
            L.append((I(f'v_exp_f32 v{t0}, v{Sb + 2*pr}'), pr, 'e'))
            L.append((I(f'v_exp_f32 v{t1}, v{Sb + 2*pr + 1}'), pr, 'e'))
            L += pend
            if pr == 0:
                pend = [(I(f'v_add_f32 v{self.vLT}, v{t0}, v{t1}'), pr, 'a')]
            else:
                pend = [(I(f'v_add_f32 v{self.vLT}, v{self.vLT}, v{t0}'), pr, 'a'), (I(f'v_add_f32 v{self.vLT}, v{self.vLT}, v{t1}'), pr, 'a')]
            pend.append((I(f'v_cvt_pk_bf16_f32 v{self.vP + pr}, v{t0}, v{t1}'), pr, 'c'))
        L += pend
        return L

    def mask_fill(self, Sn, sub, zero_m):
        nm = '0' if zero_m else f'v{self.vNM}'
        L = [[I(f's_cmp_lt_u32 s{self.sU}, s{self.sUD}'), I(f's_cselect_b64 s[{sMK}:{sMK+1}], -1, 0')],
             [I(f's_cmp_le_u32 s{self.sU}, s{self.sUD}'), I(f's_cselect_b64 s[{sMK+2}:{sMK+3}], -1, 0')],
             [I(f's_add_u32 s{self.sU}, s{self.sU}, 1')],
             [I(f'v_cndmask_b32 v{self.vLO}, v{self.vNH}, {nm}, s[{sMK}:{sMK+1}]')],
             [I(f'v_cndmask_b32 v{self.vHI}, v{self.vNH}, {nm}, s[{sMK+2}:{sMK+3}]')]]
        for r in range(16):
            L.append([I(f'v_cndmask_b32 v{Sn + 16*sub + r}, v{self.vLO}, v{self.vHI}, s[{2*r}:{2*r+1}]')])
        return L

    def rowmax(self, Sb):
        x, y = self.vX, self.vX + 1
        L = [I(f'v_max3_f32 v{x}, v{Sb}, v{Sb+1}, v{Sb+2}'), I(f'v_max3_f32 v{y}, v{Sb+3}, v{Sb+4}, v{Sb+5}')]
        k = 6
        while k < 30:
            L.append(I(f'v_max3_f32 v{x}, v{x}, v{Sb+k}, v{Sb+k+1}'))
            L.append(I(f'v_max3_f32 v{y}, v{y}, v{Sb+k+2}, v{Sb+k+3}'))
            k += 4
        L.append(I(f'v_max3_f32 v{x}, v{x}, v{Sb+30}, v{Sb+31}'))
        L.append(I(f'v_max_f32 v{x}, v{x}, v{y}'))
        L += [I(f'v_mov_b32 v{y}, v{x}'), I(f'v_permlane32_swap_b32 v{x}, v{y}'), I(f'v_max_f32 v{x}, v{x}, v{y}')]
        return L

    def first_tile(self, Sb):
        L = self.rowmax(Sb)
        L += [I(f'v_sub_f32 v{self.vNM + r}, 0, v{self.vX}') for r in range(16)]
        L += [I(f'v_sub_f32 v{Sb + r}, v{Sb + r}, v{self.vX}') for r in range(32)]
        return L

    def rare(self, par, has_next):
        Sb, Sn = self.vS[par], self.vS[par ^ 1]
        x, f = self.vX, self.vX + 2
        L = [I(f'L_rare{par}{int(has_next)}:'), I('s_nop 15')]
        L += self.rowmax(Sb)
        L.append(I(f'v_max_f32 v{x}, 0, v{x}'))
        L.append(I(f'v_sub_f32 v{f}, 0, v{x}'))
        L.append(I(f'v_exp_f32 v{f}, v{f}'))
        L += [I(f'v_sub_f32 v{self.vNM + r}, v{self.vNM + r}, v{x}') for r in range(16)]
        L += [I(f'v_sub_f32 v{Sb + r}, v{Sb + r}, v{x}') for r in range(32)]
        if has_next:
            L += [I(f'v_sub_f32 v{Sn + r}, v{Sn + r}, v{x}') for r in range(32)]
        L += [I(f'v_mul_f32 v{self.vO + r}, v{self.vO + r}, v{f}') for r in range(64)]
        L.append(I(f'v_mul_f32 v{self.vL}, v{self.vL}, v{f}'))
        L += [x_[0] for x_ in self.softmax(Sb)]
        L += [I('s_nop 1'), I(f's_setpc_b64 s[{sRET}:{sRET+1}]')]
        return L

    def ctx_epilogue(self, ps):
        x, y = self.vX + 2, self.vX + 3
        L = [I(f'v_mov_b32 v{x}, v{self.vL}'), I(f'v_mov_b32 v{y}, v{self.vL}'), I(f'v_permlane32_swap_b32 v{x}, v{y}'),
             I(f'v_add_f32 v{x}, v{x}, v{y}'), I(f'v_rcp_f32 v{x}, v{x}'),
             I(f's_lshl_b32 s{sT0}, s{sH}, 12'), I(f's_add_u32 s{sT0}, s{sT0}, s{self.sAC[ps]}')]
        per = []
        for t in range(4):
            T = []
            for c in range(2):
                b = self.vO + 16*t + 8*c
                st = 216 + 4 * ((2*t + c) & 3)
                T += [I(f'v_mul_f32 v{b+r}, v{b+r}, v{x}') for r in range(8)]
                T += [I(f'v_cvt_pk_bf16_f32 v{st+r}, v{b+2*r}, v{b+2*r+1}') for r in range(4)]
                T.append(I(f'buffer_store_dwordx4 {vr(st)}, v{self.vCS}, {srd(S_WS)}, s{sT0} offen offset:{t*1024 + c*512} sc1', tag=('ctx', ps)))
            per.append(T)
        return L, per

    def att_iter(self, name, odd, pv=True, qk=True, sm=True, mask=False, first=False, dma=True, kreset=False,
                 nxt_pv=True, qcopy=False, init=False, epi=None, bar=True, publish=None, newpass=False, maskinit=False):
        par = 1 if odd else 0
        Sb, Sn = self.vS[par], self.vS[par ^ 1]
        M, idx = [], []
        if pv:
            for u in range(4):
                for dt in range(4):
                    m = 4*u + dt
                    o = vr(self.vO + 16*dt, 16)
                    M.append(I(f'v_mfma_f32_32x32x16_bf16 {o}, {ar(4*m)}, {vr(self.vP + 4*u)}, {o}')); idx.append(m)
        if qk:
            for sub in range(2):
                for f in range(8):
                    m = 16 + 8*sub + f
                    d = vr(Sn + 16*sub, 16)
                    c = d if (f or mask) else ('0' if first else vr(self.vNM, 16))
                    M.append(I(f'v_mfma_f32_32x32x16_bf16 {d}, {ar(4*(m & 15))}, {ar(self.aQ[0] + 4*f)}, {c}')); idx.append(m)
        S = Sched(M, 6)
        n = len(M)
        pos = {m: g for g, m in enumerate(idx)}
        head = []
        full = pv and qk
        tagf = lambda e: ('dma', e['t'])
        wv = W(vm=lambda e: [('dma', k) for k in range(-4, e['t'] - 1)] + (publish[0] if publish else []))
        reads = []
        if odd:
            tg = [I(f'v_xor_b32 v{self.vB}, 0x10000, v{self.vB}'), I(f's_xor_b32 s{self.sM}, s{self.sM}, 0x10000')]
            if pv:
                S.put(0, tg[0], 'oth'); S.put(4, tg[1], 'oth')
            else:
                head += tg
        else:
            S.put(6, I(f'v_xor_b32 v{self.vA}, 0x10000, v{self.vA}'), 'oth')
        if pv:
            for m in range(self.LEAD, 16):
                S.put(min(m - self.LEAD, 2), self.frag_read(m, odd))
            if bar:
                S.put(3, [wv, I('s_barrier')], 'oth'); S.locked.add(3)
            g_after = 4
        else:
            head += [wv, I('s_barrier')]
            g_after = 0
        post = []
        if qk:
            post += [self.frag_read(m, odd) for m in range(16, 32)]
        if nxt_pv:
            post += [self.frag_read(m, odd, True) for m in range(self.LEAD)]
        D = []
        if dma:
            D += [[I(f's_add_u32 s{self.sV}, s{self.sK}, 16384'),
                   I(f's_mov_b32 s{self.sK}, s{self.sKB}') if kreset else I(f's_add_u32 s{self.sK}, s{self.sK}, 32768')]]
            dk, dv = self.att_dma('K', odd, tagf), self.att_dma('V', odd, tagf)
        if full:
            dgaps = [6, 9, 12, 15, 18, 21, 24, 27] if dma else []
            k = 0
            for g in range(4, 32):
                if g in dgaps:
                    continue
                while k < len(post) and k <= g - 4 + (1 if (g + 1) in dgaps else 0):
                    S.put(g, post[k]); k += 1
            assert k == len(post)
            if dma:
                S.put(4, D[0], 'oth')
                S.put(5, dk[0], 'oth'); S.put(17, dv[0], 'oth')
                for q in range(4):
                    S.put(dgaps[q], dk[1 + q]); S.put(dgaps[4 + q], dv[1 + q])
        elif qk:
            head += post[:self.LEAD]
            for k, r in enumerate(post[self.LEAD:]):
                S.put(k, r)
            if dma:
                head += D[0] + dk + dv
        else:
            for k, r in enumerate(post):
                S.put(4 + k, r)
        if publish:
            S.put(g_after + 1, publish[1], 'oth')
        for grp in range(4):
            m = 8 * grp
            if m in pos:
                w = W(lg=(lambda gg: (lambda e: ('fr', e['t'], gg)))(grp))
                if pos[m] == 0:
                    head.append(w)
                else:
                    S.before(pos[m], w)
        last = n - 1
        q0 = pos.get(16, n)
        items = []
        if qcopy:
            items += [(I(f'v_accvgpr_mov_b32 a{self.aQ[0] + r}, a{self.aQ[1] + r}'), 0, q0 - 2) for r in range(32)]
        if maskinit:
            items += [(I(f's_mov_b32 s{self.sU}, 0'), 0, q0 - 2), (I(f's_mov_b32 s{self.sUD}, s{sW}'), 0, q0 - 2)]
        if newpass:
            items += [(I(f's_mov_b32 s{self.sU}, 0'), 0, q0 - 2),
                      (I(f's_lshl_b32 s{self.sUD}, s{sJ}, 2'), 0, q0 - 2), (I(f's_add_u32 s{self.sUD}, s{self.sUD}, s{sW}'), 0, q0 - 2)]
        pre_epi = []
        if epi is not None:
            eh, ep = self.ctx_epilogue(epi)
            items += [(x, 0, q0 - 2) for x in eh]
        if init:
            items += [(x, 2, q0 - 2) for x in self.first_tile(Sb)]
            items += [(I(f'v_mov_b32 v{self.vL}, 0'), 2, q0 - 2)]
        if mask:
            for sub in range(2):
                for grp in self.mask_fill(Sn, sub, first):
                    if len(grp) > 1:
                        a = Atom(grp)
                        items.append((a, 0, q0 + 8*sub - 2))
                    else:
                        items.append((grp[0], 0, q0 + 8*sub - 2))
        tailv = []
        if items:
            if q0 == 0:
                head += [x[0] for x in items]
            else:
                assert not S.window(items)
        if sm:
            sl = self.softmax(Sb)
            lo = max([g for g in range(n) if any(y in [z[0] for z in items] for y in S.oth[g])] + [0]) if init else 0
            if init or not full or mask:
                it = [(x, max(lo, (4*(pr >> 2) + 3 if (k == 'c' and pv) else 0), (1 if pr >= 8 else 0)), 1 << 20) for x, pr, k in sl]
                tailv += S.window(it)
            else:
                S.put(0, [x for x, pr, k in sl[:2]], 'oth')
                S.put(1, [x for x, pr, k in sl[2:5]], 'oth')
                S.put(2, [x for x, pr, k in sl[6:8]], 'oth')
                restl = [sl[5]] + sl[8:]
                tailv += S.stream([x for x, pr, k in restl], 4, 31)
                for x, pr, k in restl:
                    if k == 'c' and x not in tailv:
                        g = [g for g in range(n) if x in S.oth[g]][0]
                        assert g >= 4 * (pr >> 2) + 3, (name, pr, g)
        if epi is not None and qk:
            z = vr(self.vZ)
            for t in range(4):
                tailv += ep[t]
                tailv.append(I(f'v_mfma_f32_32x32x16_bf16 {vr(self.vO + 16*t, 16)}, {z}, {z}, 0'))
        elif epi is not None:
            for t in range(4):
                tailv += ep[t]
        out = head + S.flat() + tailv
        if sm:
            hn = qk and not first
            out += [I(f'v_cmp_nge_f32 vcc, s{self.sTHR}, v{self.vLT}'), I(f's_cbranch_vccnz L_{name}_rare'), I(f'L_{name}_back:'),
                    I(f'v_add_f32 v{self.vL}, v{self.vL}, v{self.vLT}')]
            self.outline.append((name + '_stub', [I(f'L_{name}_rare:'), I(f's_call_b64 s[{sRET}:{sRET+1}], L_rare{par}{int(hn)}'),
                                                  I(f's_branch L_{name}_back')]))
        flat = []
        for x in out:
            flat += x.items if isinstance(x, Atom) else [x]
        self.est[name] = S.est_cycles() + 4 * sum(x.cost() for x in head + tailv)
        return flat

    def flag_store(self, soff_insts, sreg):
        return soff_insts + [I('v_mov_b32 v10, 1'), I(f'buffer_store_dword v10, v{self.vFL}, {srd(S_WS)}, s{sreg} offen sc1', tag='flag')]

    def allset(self, n):
        def cond():
            L = [I(f'v_cmp_eq_u32 vcc, 1, v13')]
            if n == 8:
                L += [I(f's_and_b32 s{sT0}, vcc_lo, 0xff'), I(f's_cmp_eq_u32 s{sT0}, 0xff')]
            else:
                L += [I(f's_cmp_eq_u32 vcc_lo, -1')]
            return L
        return cond

    def att_entry(self, S):
        Q0 = 1024
        g = Q0 + 56 * 7
        w = [x for x in S.oth[g] if isinstance(x, W)][0]
        w.vm = [w.vm, 'kvst']
        fl = [I(f's_lshl_b32 s{sT0}, s{sH}, 7'), I(f's_add_u32 s{self.sFL}, s{sT0}, {FLAG_OFF}'),
              I(f's_lshl_b32 s{sT0}, s{sJ}, 2'), I(f's_add_u32 s{sT0}, s{sT0}, s{self.sFL}')]
        assert not S.window([(x, g + 1, g + 50) for x in self.flag_store(fl, sT0)])
        setup = f'''
v_and_b32 v4, 31, v0
v_lshlrev_b32 v4, 2, v4
s_lshl_b32 s{self.sKB}, s{sH}, 20
s_lshl_b32 s{sT0}, s{sW}, 12
s_add_u32 s{self.sKB}, s{self.sKB}, s{sT0}
s_add_u32 s{self.sKB}, s{self.sKB}, {KV_OFF}
s_mov_b32 s{self.sM}, s{sT0}
s_add_u32 s{self.sK}, s{self.sKB}, 32768
s_add_u32 s{self.sV}, s{self.sKB}, 16384'''
        g = Q0 + 56 * 12
        items = [(I(l), g, g + 40) for l in setup.strip().split('\n')]
        items.append((I(f'buffer_load_dword v13, v4, {srd(S_WS)}, s{self.sFL} offen sc1', tag='poll'), g + 40, g + 54))
        assert not S.window(items)
        g = Q0 + 56 * 14
        cond = self.allset(8)
        S.put(g + 2, [W(vm='poll')] + cond() + [I('s_cbranch_scc0 L_kv_spin'), I('L_kv_ok:')], 'oth')
        self.poll('kv', 4, S_WS, f's{self.sFL}', cond)
        items = []
        for reg, m0, so, tg in ((('K0', 0), 0, self.sKB, -3), (('K1', 1), 32768, self.sK, -2), (('V0', 0), 16384, self.sV, -2)):
            items.append((I(f's_xor_b32 m0, s{self.sM}, {m0}'), g + 3, g + 100))
            for q in range(4):
                items.append((I(f'buffer_load_dwordx4 v{self.vLN}, {srd(S_WS)}, s{so} offen offset:{q*1024} sc1 lds',
                                lds_wr=reg, tag=('dma', tg), alias=['s' + reg[0][1]]), g + 3, g + 100))
        assert not S.window(items)

    def att_setup(self):
        L = []
        for r in range(16):
            m = 0
            for l in range(64):
                if 16*((r >> 2) & 1) + 8*(r >> 3) + 4*(l >> 5) + (r & 3) <= (l & 31):
                    m |= 1 << l
            L += [f's_mov_b32 s{2*r}, 0x{m & 0xffffffff:x}', f's_mov_b32 s{2*r+1}, 0x{m >> 32:x}']
        L += f'''
s_mov_b32 s{self.sTHR}, {f32(2.0**self.thr_log2)}
v_mov_b32 v{self.vNH}, {f32(-1e30)}
v_add_u32 v{self.vA}, 0x10000, v{self.vLN}
v_add_u32 v{self.vB}, 0x10000, v{self.vLN}
v_and_b32 v4, 15, v0
v_bfe_u32 v5, v0, 4, 1
v_lshrrev_b32 v6, 5, v0
v_mul_u32_u24 v5, {ACT_TILE}, v5
v_lshl_add_u32 v5, v6, 8, v5
v_lshl_add_u32 v{self.vCS}, v4, 4, v5
v_mov_b32 v{self.vL}, 0
s_sub_u32 s{self.sN}, 14, s{sJ}
s_mov_b32 s{sPASS}, 0'''.strip().split('\n')
        L += [f'v_mov_b32 v{self.vZ + r}, 0' for r in range(4)]
        L = [I(l) for l in L]
        z = vr(self.vZ)
        L += [I(f'v_mfma_f32_32x32x16_bf16 {vr(self.vO + 16*t, 16)}, {z}, {z}, 0') for t in range(4)]
        return L

    thr_log2 = 20

    def attention(self):
        self.est = {}
        A = self.att_iter
        self.block('a_pro', A('pro', True, pv=False, sm=False, first=True, nxt_pv=False) + self.first_tile(self.vS[0]))
        self.block('a_it0', A('it0', False, pv=False))
        self.block('a_loop1', [I('.p2align 6'), I('L_loop:')] + A('lp1', True))
        self.block('a_loop2', A('lp2', False) + [I(f's_sub_u32 s{self.sN}, s{self.sN}, 1'), I(f's_cmp_lg_u32 s{self.sN}, 0'), I('s_cbranch_scc1 L_loop')])
        self.block('a_mask1', [I('L_mask:')] + A('mk1', True, mask=True, kreset=True, maskinit=True))
        self.block('a_mask2', A('mk2', False, mask=True) + [I(f's_cmp_eq_u32 s{sPASS}, 1'), I('s_cbranch_scc1 L_last')])
        fl = [I(f's_lshl_b32 s{sT0}, s{sJ}, 7'), I(f's_lshl_b32 s{sT1}, s{sH}, 2'), I(f's_add_u32 s{sT0}, s{sT0}, s{sT1}'),
              I(f's_add_u32 s{self.sFL}, s{sT0}, {FLAG_OFF + 4096}')]
        self.block('a_x1', A('x1', True, mask=True, first=True, qcopy=True, newpass=True, publish=(['hst'], self.flag_store(fl, self.sFL))))
        self.block('a_x2', A('x2', False, mask=True, init=True, epi=0) +
                   [I(f's_mov_b32 s{sPASS}, 1'), I(f's_sub_u32 s{self.sN}, s{sJ}, 1'), I(f's_cmp_gt_u32 s{sJ}, 1'), I('s_cbranch_scc1 L_loop'),
                    I(f's_cmp_eq_u32 s{sJ}, 1'), I('s_cbranch_scc1 L_mask')])
        self.block('a_last', [I('L_last:')] + A('last', True, qk=False, dma=False))
        self.block('a_fin', A('fin', False, qk=False, sm=False, dma=False, nxt_pv=False, bar=False, epi=1))
        for par, hn in ((0, 1), (1, 0), (1, 1)):
            self.outline.append((f'rare{par}{hn}', self.rare(par, hn)))

    def out_phase(self):
        NR = 8
        D = self.k3_dist
        sAB, sWO, sWDn, sLM, sFH = 38, 39, 40, 41, 42
        L = [I(l) for l in f'''
s_and_b32 s{sT0}, s{sB}, 7
s_lshr_b32 s{sT1}, s{sB}, 3
s_and_b32 s{sT2}, s{sT1}, 3
s_lshl_b32 s{sT0}, s{sT0}, 2
s_add_u32 s{sA}, s{sT0}, s{sT2}
s_lshr_b32 s{sBb}, s{sT1}, 2
s_mul_i32 s{sAB}, s{sA}, {4*ACT_TILE}
s_lshl_b32 s{sT0}, s{sW}, 10
s_add_u32 s{sAB}, s{sAB}, s{sT0}
s_add_u32 s{sAB}, s{sAB}, {ACT_OFF}
s_lshl_b32 s{sWO}, s{sBb}, 7
s_lshl_b32 s{sT0}, s{sW}, 15
s_add_u32 s{sWO}, s{sWO}, s{sT0}
s_mov_b32 s{sLM}, s{sT0}
s_lshr_b32 s{sT1}, s{sA}, 1
s_sub_u32 s{sT2}, 15, s{sT1}
s_min_u32 s{sT1}, s{sT1}, s{sT2}
s_lshl_b32 s{sT1}, s{sT1}, 7
s_add_u32 s{sFH}, s{sT1}, {FLAG_OFF + 4096}
v_and_b32 v4, 31, v0
v_lshlrev_b32 v4, 2, v4
v_lshrrev_b32 v8, 2, v0
v_lshrrev_b32 v9, 3, v0
v_and_b32 v9, 3, v9
v_lshlrev_b32 v9, 5, v9
v_lshl_add_u32 v8, v8, 7, v9
v_and_b32 v9, 3, v0
v_lshl_add_u32 v8, v9, 3, v8
v_add_u32 v{self.vWR[0]}, s{sLM}, v8
v_xor_b32 v{self.vWR[1]}, 32, v{self.vWR[0]}
v_xor_b32 v{self.vWR[2]}, 64, v{self.vWR[0]}
v_xor_b32 v{self.vWR[3]}, 0x60, v{self.vWR[0]}
s_cmp_eq_u32 s{sW}, 3
s_cselect_b32 s{sC}, {OOB}, 0'''.strip().split('\n')]
        L.append(I(f'buffer_load_dword v13, v4, {srd(S_WS)}, s{sFH} offen sc1', tag='poll'))
        L += [W(vm='all', lg='all'), I('s_barrier')]
        L += self.flag_store([I(f's_add_u32 s{sT0}, s{self.sFL}, 1024')], sT0)
        cond = self.allset(32)
        L += cond() + [I('s_cbranch_scc0 L_h_spin'), I('L_h_ok:')]
        self.poll('h', 4, S_WS, f's{sFH}', cond)
        L += self.stamp()

        def loads(s):
            r = s % NR
            G = []
            for m in range(4):
                if s < 11:
                    so, S_ = s * 128 * 1024 + m * 8192, S_WD
                else:
                    so, S_ = (s - 11) * 128 * 1024 + (0, 2, 1, 3)[m] * 8192, S_WO
                G.append([I(f's_add_u32 m0, s{sLM}, {r*4096 + m*1024}'), I(f's_add_u32 s{sT5}, s{sWO}, {so}'),
                          I(f'buffer_load_dwordx4 v{self.vW3}, {srd(S_)}, s{sT5} offen lds', lds_wr=(('priv', r), s), tag=('o', s))])
            for jj in range(4):
                so = jj * ACT_TILE + ((128 + 4*s) if s < 11 else 4*(s - 11)) * 1024
                g = [I(f's_add_u32 s{sT4}, s{sAB}, {so}')]
                if s == 10:
                    g.append(I(f's_add_u32 s{sT4}, s{sT4}, s{sC}'))
                g.append(I(f'buffer_load_dwordx4 {ar(16*r + 4*jj)}, v{self.vLN}, {srd(S_WS)}, s{sT4} offen sc1', tag=('o', s)))
                G.append(g)
            return G

        def reads(s):
            r = s % NR
            return [I(f'ds_read_b64_tr_b16 {ar(128 + 16*(s&1) + 4*i + 2*hf, 2)}, v{self.vWR[i]} offset:{r*4096 + hf*2048}',
                      lds_rd=(('priv', r), s), tag=('or', s)) for i in range(4) for hf in range(2)]
        for s in range(D):
            for g in loads(s): L += g
        L += [W(vm=('o', 0))] + reads(0)
        M = []
        for s in range(43):
            for i in range(4):
                for jj in range(4):
                    d = vr(32 + 16*jj + 4*i)
                    M.append(I(f'v_mfma_f32_16x16x32_bf16 {d}, {ar(128 + 16*(s&1) + 4*i)}, {ar(16*(s % NR) + 4*jj)}, {d if s else 0}'))
        S = Sched(M, 2)
        L.append(W(lg=('or', 0)))
        for s in range(43):
            g0 = 16 * s
            if s + D == 11:
                c2 = self.allset(32)
                S.put(g0, [I(f's_add_u32 s{sFH}, s{sFH}, 1024'), I(f'buffer_load_dword v13, v4, {srd(S_WS)}, s{sFH} offen sc1', tag='poll'),
                           W(vm='poll')] + c2() + [I('s_cbranch_scc0 L_e_spin'), I('L_e_ok:')], 'oth')
                self.poll('e', 4, S_WS, f's{sFH}', c2)
            if s + D < 43:
                for k, g in enumerate(loads(s + D)):
                    S.put(g0 + k, g, 'oth')
            if s + 1 < 43:
                S.put(g0 + 8, [W(vm=('o', s + 1))] + reads(s + 1)[:2], 'oth')
                for k, r in enumerate(reads(s + 1)[2:]):
                    S.put(g0 + 9 + k // 2, r)
                S.before(g0 + 16, W(lg=('or', s + 1)))
        L += S.flat()
        L += self.stamp()
        PITCH = 272
        L += [I(l) for l in f'''
v_and_b32 v4, 15, v0
v_lshrrev_b32 v5, 4, v0
v_mul_u32_u24 v4, {PITCH}, v4
v_lshl_add_u32 v4, v5, 4, v4
s_mul_i32 s{sT0}, s{sW}, {64*PITCH}
v_add_u32 v4, s{sT0}, v4
v_lshrrev_b32 v5, 3, v0
v_and_b32 v6, 7, v0
v_mul_u32_u24 v7, {PITCH}, v5
v_lshl_add_u32 v7, v6, 5, v7
s_mul_i32 s{sT0}, s{sW}, {16*PITCH}
v_add_u32 v7, s{sT0}, v7
v_lshlrev_b32 v5, 10, v5
v_lshl_add_u32 v5, v6, 4, v5
s_lshl_b32 s{sT0}, s{sA}, 16
s_lshl_b32 s{sT1}, s{sW}, 14
s_add_u32 s{sT0}, s{sT0}, s{sT1}
s_lshl_b32 s{sT1}, s{sBb}, 7
s_add_u32 s{sT0}, s{sT0}, s{sT1}
s_add_u32 s{sT1}, s{sT0}, 8192'''.strip().split('\n')]
        L.append(I(f'buffer_load_dwordx4 v[8:11], v5, {srd(S_X)}, s{sT0} offen', tag='res'))
        L.append(I(f'buffer_load_dwordx4 v[12:15], v5, {srd(S_X)}, s{sT1} offen', tag='res'))
        L.append(I('s_barrier'))
        for jj in range(4):
            for i in range(4):
                L.append(I(f'ds_write_b128 v4, {vr(32 + 16*jj + 4*i)} offset:{jj*16*PITCH + i*64}', lds_wr=('red', 0), tag='rw'))
        L += [W(lg='rw'), I('s_barrier')]
        for hf in range(2):
            for p in range(4):
                for q in range(2):
                    L.append(I(f'ds_read_b128 {vr(96 + 32*hf + 8*p + 4*q)}, v7 offset:{p*64*PITCH + hf*8*PITCH + q*16}', lds_rd=('red', 0), tag=('rr', hf)))
        for hf in range(2):
            b = 96 + 32*hf
            x = 8 + 4*hf
            L.append(W(lg=('rr', hf), vm='res'))
            for r in range(8):
                L += [I(f'v_add_f32 v{b+r}, v{b+r}, v{b+8+r}'), I(f'v_add_f32 v{b+16+r}, v{b+16+r}, v{b+24+r}')]
            for r in range(4):
                L += [I(f'v_lshlrev_b32 v{b+8+2*r}, 16, v{x+r}'), I(f'v_and_b32 v{b+9+2*r}, 0xffff0000, v{x+r}')]
            for r in range(8):
                L += [I(f'v_add_f32 v{b+r}, v{b+r}, v{b+16+r}'), I(f'v_add_f32 v{b+r}, v{b+r}, v{b+8+r}')]
            for r in range(4):
                L.append(I(f'v_cvt_pk_bf16_f32 v{b+8+r}, v{b+2*r}, v{b+2*r+1}'))
            L.append(I(f'buffer_store_dwordx4 {vr(b+8)}, v5, {srd(S_OUT)}, s{sT0 + hf} offen', tag='out'))
        self.block('out', L)

    k3_dist = 6

    def build(self):
        self.prologue()
        S = self.gemm_phases()
        self.att_entry(S)
        H, Q = self.qgu_epilogue()
        self.block('gemm', S.flat() + self.stamp() + H + Q + self.att_setup() + self.stamp())
        self.attention()
        self.block('att_end', self.stamp())
        self.out_phase()
        self.block('end', self.stamp() + [I('L_end:'), I('s_endpgm')])
        for n, L in self.outline:
            self.block('o_' + n, L)
        B = self.blocks

        def trace(j, rare=False):
            def tr():
                out = []
                def add(n, t=None):
                    for x in B[n]:
                        out.append((x, {'t': t}))
                        if rare and getattr(x, 'op', '') == 's_cbranch_vccnz':
                            st = B['o_' + x.text.split('L_')[1].replace('_rare', '_stub')]
                            tgt = st[1].text.split('L_')[1]
                            out.extend((y, {'t': t}) for y in st[:2] + B['o_' + tgt] + st[2:])
                for n in ('pro', 'kv_pre', 'gemm'): add(n)
                add('a_pro', -1); add('a_it0', 0)
                t = 1
                for _ in range(14 - j):
                    add('a_loop1', t); add('a_loop2', t + 1); t += 2
                add('a_mask1', t); add('a_mask2', t + 1); t += 2
                add('a_x1', t); add('a_x2', t + 1); t += 2
                for _ in range(j - 1):
                    add('a_loop1', t); add('a_loop2', t + 1); t += 2
                if j >= 1:
                    add('a_mask1', t); add('a_mask2', t + 1); t += 2
                add('a_last', t); add('a_fin', t + 1)
                assert t == 33
                for n in ('att_end', 'out', 'end'): add(n)
                return out
            return tr
        traces = [trace(j) for j in (0, 1, 2, 7)] + [trace(2, True), trace(0, True)]
        traces += [(lambda n=n: [(x, {}) for x in B['o_' + n]]) for n in ('xn', 'kv', 'h', 'e')]
        errs = resolve(traces)
        for e in sorted(set(errs))[:30]:
            print('ERR', e, file=sys.stderr)
        assert not errs
        for n in self.order:
            print(stats(B[n], n), self.est.get(n, ''), file=sys.stderr)
        print('gemm est cycles', S.est_cycles(), self.est, file=sys.stderr)
        body = ''.join(render(B[n]) for n in self.order)
        hdr = open('cdna_kernels/' + NAME + '.s.ref').read().split('; Override')[0]
        txt = hdr + f'''; @launch grid=(256,1,1) block=(256,1,1) lds={LDS_BYTES}
.amdgcn_target "amdgcn-amd-amdhsa--gfx950"
.text
.globl {NAME}_kernel
.p2align 8
.type {NAME}_kernel,@function
{NAME}_kernel:
{body}.p2align 8
L_pad:
.fill {self.pad_words}, 4, 0xbf810000
.section .rodata,"a"
.p2align 6
.amdhsa_kernel {NAME}_kernel
  .amdhsa_next_free_vgpr 512
  .amdhsa_next_free_sgpr 102
  .amdhsa_accum_offset 256
  .amdhsa_group_segment_fixed_size 0
  .amdhsa_kernarg_size 104
  .amdhsa_user_sgpr_count 2
  .amdhsa_user_sgpr_kernarg_segment_ptr 1
  .amdhsa_system_sgpr_workgroup_id_x 1
.end_amdhsa_kernel
'''
        return txt

    pad_words = 64


if __name__ == '__main__':
    import argparse
    ap = argparse.ArgumentParser()
    ap.add_argument('-o', default='cdna_kernels/' + NAME + '.s')
    ap.add_argument('--stamps', action='store_true')
    ap.add_argument('--set', action='append', default=[])
    a = ap.parse_args()
    g = Gen(stamps=a.stamps)
    for kv in a.set:
        k_, v_ = kv.split('=')
        setattr(g, k_, eval(v_))
    open(a.o, 'w').write(g.build())
```
